```python
import torch

def _softmax(x, axis=-1):
    return torch.softmax(x, dim=axis)
def _gelu(x):
    return torch.nn.functional.gelu(x, approximate="tanh")
def _silu(x):
    return torch.nn.functional.silu(x)
def _sigmoid(x):
    return torch.sigmoid(x)
def _layernorm(x, axis=-1, eps=1e-5):
    m = x.mean(dim=axis, keepdim=True)
    v = x.var(dim=axis, keepdim=True, unbiased=False)
    return (x - m) / torch.sqrt(v + eps)
def _scatter_add(tgt, idx, src, axis=0):
    return tgt.clone().index_add_(axis, idx, src)
def _segment_sum(src, seg, n):
    out = torch.zeros((n,) + src.shape[1:], dtype=src.dtype)
    return out.index_add_(0, seg, src)
def _pad(x, pw):
    flat = tuple(v for pair in reversed(pw) for v in pair)
    return torch.nn.functional.pad(x, flat)

kernel_name = 'standalone__linear_kernel_rfa__decode'

def setup_inputs():

    _w = (lambda a: (lambda t: t.to(torch.bfloat16) if t.is_floating_point() else t)(torch.as_tensor(a)))
    B, H, Sq, Sk, D, M = 1, 32, 1, 8192, 128, 16
    return {
        "q": _w((lambda *s: torch.randn(*s, dtype=torch.bfloat16) * 0.4)(B, H, Sq, D)),
        "k": _w((lambda *s: torch.randn(*s, dtype=torch.bfloat16) * 1.6)(B, H, Sk, D)),
        "v": _w((lambda *s: torch.randn(*s, dtype=torch.bfloat16) * 1.6)(B, H, Sk, D)),
        "omega": _w((lambda *s: torch.randn(*s, dtype=torch.bfloat16) * 1.6)(M, D)),
    }

def reference(q, k, v, omega):
    d = q.shape[-1]
    m = omega.shape[0]
    scale = float(d) ** -0.25
    qs = q * scale
    ks = k * scale
    q_proj = torch.einsum("bhsd,md->bhsm", qs, omega)
    k_proj = torch.einsum("bhsd,md->bhsm", ks, omega)
    q_sq = 0.5 * torch.einsum("bhsd,bhsd->bhs", qs, qs)[..., None]
    k_sq = 0.5 * torch.einsum("bhsd,bhsd->bhs", ks, ks)[..., None]
    inv_sqrt_m = float(m) ** -0.5
    phi_q = torch.exp(q_proj - q_sq) * inv_sqrt_m + 1e-6
    phi_k = torch.exp(k_proj - k_sq) * inv_sqrt_m + 1e-6
    kv = torch.einsum("bhsm,bhsd->bhmd", phi_k, v)
    z  = torch.einsum("bhsm->bhm", phi_k)
    num = torch.einsum("bhqm,bhmd->bhqd", phi_q, kv)
    den = torch.einsum("bhqm,bhm->bhq", phi_q, z)[..., None] + 1e-6
    return num / den
```

```python
import re
_R = re.compile(r'^-?(?:abs\()?([vas])(\d+)\)?$')
_RR = re.compile(r'^-?([vas])\[(\d+):(\d+)\]$')
def regs(tok):
    tok = tok.strip()
    m = _R.match(tok)
    if m: return {(m.group(1), int(m.group(2)))}
    m = _RR.match(tok)
    if m: return {(m.group(1), i) for i in range(int(m.group(2)), int(m.group(3))+1)}
    if tok == 'vcc': return {('s', 106), ('s', 107)}
    if tok == 'exec': return {('s', 126), ('s', 127)}
    if tok == 'm0': return {('s', 124)}
    return set()
TRANS = ('v_exp_f32', 'v_log_f32', 'v_rcp_f32', 'v_rsq_f32', 'v_sqrt_f32', 'v_sin_f32', 'v_cos_f32')
def split_ops(s):
    out = []; depth = 0; cur = ''
    for ch in s:
        if ch == '[': depth += 1
        if ch == ']': depth -= 1
        if ch == ',' and depth == 0: out.append(cur.strip()); cur = ''
        else: cur += ch
    if cur.strip(): out.append(cur.strip())
    return out
class Emit:
    def __init__(self):
        self.lines = []
        self.hist = []
        self.nops = 0
        self.counts = {}
    def raw(self, s): self.lines.append(s)
    def label(self, s):
        self.lines.append(s + ':'); self.barrier_hist()
    def barrier_hist(self):
        pass
    def classify(self, line):
        line = line.split(';')[0].strip()
        parts = line.split(None, 1)
        mn = parts[0]; rest = parts[1] if len(parts) > 1 else ''
        ops = split_ops(rest)
        toks = []
        for o in ops:
            toks.append(o.split()[0] if o.split() else o)
        d = dict(mn=mn, dst=set(), src=set(), srcC=set(), kind='other', states=1, sdst=set())
        if mn == 's_nop':
            d['states'] = int(toks[0], 0) + 1; return d
        if mn.startswith('v_mfma'):
            d['kind'] = 'sgemm' if mn.endswith('_f32') and not 'bf16' in mn and mn.count('f32') == 2 else 'xdl'
            d['passes'] = {'v_mfma_f32_16x16x32_bf16': 4, 'v_mfma_f32_16x16x16_bf16': 4, 'v_mfma_f32_16x16x4_f32': 8, 'v_mfma_f32_32x32x16_bf16': 8, 'v_mfma_f32_4x4x4_16b_bf16': 2}[mn]
            d['dst'] = regs(toks[0]); d['src'] = regs(toks[1]) | regs(toks[2]); d['srcC'] = regs(toks[3])
            return d
        if mn.startswith('v_'):
            d['kind'] = 'valu'
            base = re.sub(r'_(e32|e64|dpp|sdwa)$', '', mn)
            d['trans'] = base in TRANS
            d['dpp'] = ('row_' in line or 'quad_perm' in line or 'wave_' in line)
            if base.startswith('v_permlane') and 'swap' in base:
                d['perm'] = True
                d['dst'] = regs(toks[0]) | regs(toks[1]); d['src'] = set(d['dst']); return d
            if base in ('v_readfirstlane_b32', 'v_readlane_b32'):
                d['rl'] = True
            nd = 1
            if base in ('v_add_co_u32', 'v_addc_co_u32', 'v_div_scale_f32', 'v_sub_co_u32'): nd = 2
            for t in toks[:nd]: d['dst'] |= regs(t)
            for t in toks[nd:]: d['src'] |= regs(t)
            if base in ('v_fmac_f32', 'v_dot2c_f32_bf16', 'v_pk_fmac_f16', 'v_writelane_b32'): d['src'] |= regs(toks[0])
            if base == 'v_div_fmas_f32': d['src'] |= regs('vcc')
            if base == 'v_cndmask_b32' and len(toks) == 3: d['src'] |= regs('vcc')
            return d
        if mn.startswith(('buffer_', 'global_', 'ds_', 'flat_')):
            d['kind'] = 'mem'
            allr = set()
            for t in toks: allr |= regs(t)
            is_load = ('load' in mn or 'read' in mn or 'bpermute' in mn or 'swizzle' in mn) and ' lds' not in line and '_lds_' not in mn
            is_atomic_ret = 'atomic' in mn and 'sc0' in line
            if is_load or is_atomic_ret:
                d['dst'] = regs(toks[0]);
                for t in toks[1:]: d['src'] |= regs(t)
            else:
                d['src'] = allr
            d['widestore'] = ('store' in mn and ('x4' in mn or 'x3' in mn))
            d['ldsdma'] = ' lds' in line or '_lds_' in mn
            return d
        if mn.startswith('s_'):
            d['kind'] = 'salu'
            if toks and not mn.startswith(('s_cmp', 's_waitcnt', 's_barrier', 's_cbranch', 's_branch', 's_endpgm', 's_setprio', 's_sleep')):
                d['dst'] = regs(toks[0])
                for t in toks[1:]: d['src'] |= regs(t)
            return d
        return d
    def need(self, p, c):
        n = 0
        vd = {r for r in p['dst'] if r[0] in 'va'}
        sd = {r for r in p['dst'] if r[0] == 's'}
        csrc = c['src'] | c['srcC']
        if p['kind'] == 'valu':
            if c['kind'] in ('xdl', 'sgemm') and vd & csrc: n = max(n, 2)
            if c['kind'] == 'valu':
                if p.get('trans') and vd & (csrc): n = max(n, 1)
                if (c.get('perm') or c.get('dpp')) and vd & csrc: n = max(n, 2)
                if c.get('rl') and vd & csrc: n = max(n, 1)
                if sd & csrc: n = max(n, 4 if p['mn'].startswith('v_div_scale') or c['mn'].startswith('v_div_fmas') else 2)
            if c['kind'] == 'mem' and sd & csrc: n = max(n, 5)
            if c['kind'] == 'salu' and sd & csrc: n = max(n, 1)
        if p['kind'] in ('xdl', 'sgemm'):
            ps = p['passes']
            if p['kind'] == 'xdl':
                tab_ab = {2: 5, 4: 8, 8: 12}[ps]; tab_c = {2: 4, 4: 6, 8: 10}[ps]; war = {2: 1, 4: 3, 8: 7}[ps]
            else:
                tab_ab = {2: 4, 4: 6, 8: 10}[ps]; tab_c = {2: 2, 4: 4, 8: 8}[ps]; war = 0
            if c['kind'] in ('xdl', 'sgemm'):
                if vd & c['src']: n = max(n, tab_ab)
                if vd & c['srcC']:
                    if not (c['srcC'] == vd and c['kind'] == p['kind'] and c['passes'] == ps): n = max(n, tab_c)
                if vd & c['dst'] and not (vd & c['srcC']): n = max(n, tab_ab)
            if c['kind'] == 'valu':
                if vd & (csrc | c['dst']): n = max(n, tab_ab)
                if p['srcC'] & c['dst']: n = max(n, war)
            if c['kind'] == 'mem':
                if vd & (csrc | c['dst']): n = max(n, tab_ab)
        if p['kind'] == 'mem' and p.get('widestore'):
            if c['kind'] == 'valu' and (p['src'] & c['dst']): n = max(n, 2)
            elif c['dst'] & p['src']: n = max(n, 1)
        if p['kind'] == 'salu' and ('s', 124) in p['dst'] and c['kind'] == 'mem' and c.get('ldsdma'): n = max(n, 1)
        return n
    def __call__(self, line):
        c = self.classify(line)
        dist = 0; pad = 0
        for p in reversed(self.hist[-24:]):
            n = self.need(p, c)
            if n - dist > pad: pad = n - dist
            dist += p['states']
            if dist >= 24: break
        while pad > 0:
            k = min(pad, 16)
            self.lines.append(f'    s_nop {k-1}')
            self.hist.append(dict(mn='s_nop', dst=set(), src=set(), srcC=set(), kind='other', states=k))
            self.nops += k
            pad -= k
        self.lines.append('    ' + line)
        self.hist.append(c)
        self.counts[c['kind']] = self.counts.get(c['kind'], 0) + 1
    def text(self): return '\n'.join(self.lines) + '\n'
```

```python
import sys, argparse, struct
from emit import Emit
KN = 'standalone__linear_kernel_rfa__decode_kernel'
HEADER = """; Kernarg layout for this problem (56 bytes, ptrs only, base s[0:1]):
"""
def f2u(x): return struct.unpack('<I', struct.pack('<f', x))[0]
SCALE = f2u(128.0 ** -0.25)
LOG2E = f2u(1.4426950408889634)
EPS_BF = 0x35860000

def gen(NW=8, NWG=256, GK=4, GV=4, G=8, lead=2, flags='nt', inter=1, xcdmap=0, stamps=0, lds_min=0, final='last', kfirst=0):
    PW = NWG // 32
    tiles_per_wg = 512 // PW
    T = tiles_per_wg // NW
    E = Emit()
    lds = max(NW*1280, lds_min)
    E.raw(HEADER.rstrip())
    E.raw(f'; @launch grid=({NWG},1,1) block=({NW*64},1,1) lds={lds}')
    E.raw('.amdgcn_target "amdgcn-amd-amdhsa--gfx950"'); E.raw('.text'); E.raw(f'.globl {KN}'); E.raw('.p2align 8')
    E.raw(f'.type {KN},@function'); E.raw(f'{KN}:')
    vLane, vKoff, vVoff, vOnes = 0, 1, 2, 3
    vSel = 4; vPhiq = 8; vX = 10; vKsq = 11; vAcc = 12; vDen = 16; vOm = 20; vP = 36; vG = 40; vS = 44
    vT = 48; vPk = 56; vQoff = 58; vTmp = 59; vA3 = 60; vW = 76; vK = vW + 4*lead
    vK = (vK + 3)//4*4
    nV = vK + 16*GK
    sK, sV = 20, 24
    sKo, sVo = 28, 29
    sWave, sB, sH = 30, 31, 32
    sScale = 34
    sMask, sLog2e, sEps = 36, 37, 38
    sM = 48
    def vr(b, n=4): return f'v[{b}:{b+n-1}]'
    def ar(b, n=4): return f'a[{b}:{b+n-1}]'
    if stamps: E('s_memrealtime s[40:41]')
    E(f's_cmp_ge_u32 s2, {NWG}'); E('s_cbranch_scc1 L_end')
    E('s_load_dwordx4 s[4:7], s[0:1], 0')
    E('s_load_dwordx4 s[8:11], s[0:1], 16')
    E('s_load_dwordx4 s[12:15], s[0:1], 32')
    E('s_load_dwordx2 s[16:17], s[0:1], 48')
    E(f'v_lshrrev_b32 v{vTmp}, 6, v0')
    E(f'v_and_b32 v{vLane}, 63, v0')
    E(f'v_readfirstlane_b32 s{sWave}, v{vTmp}')
    E(f'v_and_b32 v{vT}, 15, v{vLane}')
    E(f'v_lshrrev_b32 v{vT+1}, 4, v{vLane}')
    E(f'v_lshlrev_b32 v{vQoff}, 4, v{vT+1}')
    E(f'v_lshl_add_u32 v{vKoff}, v{vT}, 8, v{vQoff}')
    E(f'v_lshlrev_b32 v{vVoff}, 10, v{vT+1}')
    E(f'v_lshl_add_u32 v{vVoff}, v{vT}, 4, v{vVoff}')
    lg = PW.bit_length() - 1
    if xcdmap:
        E('s_and_b32 s18, s2, 7'); E(f's_lshl_b32 s18, s18, {2+lg}'); E('s_lshr_b32 s19, s2, 3'); E(f's_add_u32 s{sB}, s18, s19')
    else:
        E(f's_mov_b32 s{sB}, s2')
    E(f's_lshr_b32 s{sH}, s{sB}, {lg}')
    if inter == 0:
        E(f's_mul_i32 s{sKo}, s{sB}, {tiles_per_wg*4096}'); E(f's_mul_i32 s18, s{sWave}, {T*4096}'); E(f's_add_u32 s{sKo}, s{sKo}, s18'); step = 4096
    elif inter == 1:
        E(f's_mul_i32 s{sKo}, s{sB}, {tiles_per_wg*4096}'); E(f's_lshl_b32 s18, s{sWave}, 12'); E(f's_add_u32 s{sKo}, s{sKo}, s18'); step = 4096*NW
    elif inter == 3:
        E(f's_lshl_b32 s{sKo}, s{sH}, 21'); E(f's_and_b32 s18, s{sB}, {PW-1}'); E(f's_mul_i32 s18, s18, {NW*4096}'); E(f's_add_u32 s{sKo}, s{sKo}, s18')
        E(f's_lshl_b32 s18, s{sWave}, 12'); E(f's_add_u32 s{sKo}, s{sKo}, s18'); step = 4096*NW*PW
    E(f's_mov_b32 s{sVo}, s{sKo}')
    E(f's_lshl_b32 s18, s{sH}, 8')
    E(f'v_add_u32 v{vQoff}, s18, v{vQoff}')
    E(f's_mov_b32 s{sK+2}, 0x4000000'); E(f's_mov_b32 s{sK+3}, 0x20000')
    E(f's_mov_b32 s{sV+2}, 0x4000000'); E(f's_mov_b32 s{sV+3}, 0x20000')
    E('s_waitcnt lgkmcnt(0)')
    E(f's_mov_b32 s{sK}, s6'); E(f's_mov_b32 s{sK+1}, s7')
    E(f's_mov_b32 s{sV}, s8'); E(f's_mov_b32 s{sV+1}, s9')
    issued = []
    def wait_for(tag):
        idx = max(i for i, t in enumerate(issued) if t == tag)
        n = len(issued) - 1 - idx
        assert n <= 63, n
        if n < wait_for.level or True:
            E(f's_waitcnt vmcnt({n})')
    wait_for.level = 99
    order = []
    ki = vi = 0
    while ki < T or vi < T:
        if ki < T and (ki - vi < lead or vi >= T): order.append(('k', ki)); ki += 1
        else: order.append(('v', vi)); vi += 1
    st = dict(nxt=0, done=0, kfree=GK, vfree=GV)
    def kreg(t): return vK + 16*(t % GK)
    def vreg(t): return 16*(t % GV)
    def issue_group(ty, t):
        for j in range(4):
            if ty == 'k':
                E(f'buffer_load_dwordx4 {vr(kreg(t)+4*j)}, v{vKoff}, s[{sK}:{sK+3}], s{sKo} offen offset:{64*j} {flags}')
            else:
                E(f'buffer_load_dwordx4 {ar(vreg(t)+4*j)}, v{vVoff}, s[{sV}:{sV+3}], s{sVo} offen offset:{256*j} {flags}')
            issued.append((ty, t, j))
        if t < T-1:
            if ty == 'k': E(f's_add_u32 s{sKo}, s{sKo}, {step}')
            else: E(f's_add_u32 s{sVo}, s{sVo}, {step}')
    def pump(maxn=99):
        n = 0
        while st['nxt'] < len(order) and st['nxt'] - st['done'] < G and n < maxn:
            ty, t = order[st['nxt']]
            key = 'kfree' if ty == 'k' else 'vfree'
            if st[key] == 0: break
            st[key] -= 1
            issue_group(ty, t); st['nxt'] += 1; n += 1
    if kfirst: pump(kfirst)
    for j in range(4):
        E(f'global_load_dwordx4 {vr(vOm+4*j)}, v{vKoff}, s[10:11] offset:{64*j}'); issued.append(('om', 0, j))
    for j in range(4):
        E(f'global_load_dwordx4 {vr(vA3+4*j)}, v{vQoff}, s[4:5] offset:{64*j}'); issued.append(('q', 0, j))
    pump()
    E(f's_mov_b32 s{sScale}, {SCALE:#x}'); E(f's_mov_b32 s{sScale+1}, {SCALE:#x}')
    E(f's_mov_b32 s{sMask}, 0xffff0000'); E(f's_mov_b32 s{sLog2e}, {LOG2E:#x}'); E(f's_mov_b32 s{sEps}, {EPS_BF:#x}')
    for r in range(4):
        E(f's_mov_b32 s{sM+2*r}, {((1 | 1 << 20) << r):#x}'); E(f's_mov_b32 s{sM+2*r+1}, {((1 << 8 | 1 << 28) << r):#x}')
    E(f'v_mov_b32 v{vOnes}, 1.0')
    for r in range(4):
        E(f'v_mov_b32 v{vAcc+r}, 0'); E(f'v_mov_b32 v{vDen+r}, 0')
    E(f'v_mov_b32 v{vT+2}, 0x0706'); E(f'v_mov_b32 v{vT+3}, 0x0302')
    E(f'v_cmp_gt_u32 vcc, 8, v{vT}')
    E(f'v_cndmask_b32 v{vT+2}, v{vT+3}, v{vT+2}, vcc')
    E(f'v_lshlrev_b32 v{vT+3}, 16, v{vT+2}'); E(f'v_or_b32 v{vT+3}, 0x0c0c, v{vT+3}')
    E(f'v_or_b32 v{vT+2}, 0x0c0c0000, v{vT+2}')
    E(f'v_and_b32 v{vT+4}, 1, v{vT}')
    E(f'v_cmp_eq_u32 vcc, 1, v{vT+4}')
    E(f'v_cndmask_b32 v{vT+2}, v{vT+2}, v{vT+3}, vcc')
    E(f'v_bfe_u32 v{vT+4}, v{vT}, 1, 2')
    E(f'v_mov_b32 v{vT+3}, 0x0c0c0c0c')
    for c in range(4):
        E(f'v_cmp_eq_u32 vcc, {c}, v{vT+4}')
        E(f'v_cndmask_b32 v{vSel+c}, v{vT+3}, v{vT+2}, vcc')
    def procK(base, tagf, release, dstpk):
        for j in range(4):
            wait_for(tagf(j))
            b = base + 4*j
            for c in range(4):
                E(f'v_lshlrev_b32 v{vT+2*c}, 16, v{b+c}')
                E(f'v_and_b32 v{vT+2*c+1}, s{sMask}, v{b+c}')
            for c in range(4):
                E(f'v_pk_mul_f32 {vr(vT+2*c,2)}, {vr(vT+2*c,2)}, s[{sScale}:{sScale+1}]')
            for c in range(4):
                E(f'v_cvt_pk_bf16_f32 v{b+c}, v{vT+2*c}, v{vT+2*c+1}')
            if j > 0:
                jj = j-1; bb = base + 4*jj
                E(f'v_mfma_f32_16x16x32_bf16 {vr(vG)}, {vr(bb)}, {vr(bb)}, {vr(vG) if jj else 0}')
                E(f'v_mfma_f32_16x16x32_bf16 {vr(vP)}, {vr(vOm+4*jj)}, {vr(bb)}, {vr(vP) if jj else 0}')
        bb = base + 12
        E(f'v_mfma_f32_16x16x32_bf16 {vr(vG)}, {vr(bb)}, {vr(bb)}, {vr(vG)}')
        E(f'v_mfma_f32_16x16x32_bf16 {vr(vP)}, {vr(vOm+12)}, {vr(bb)}, {vr(vP)}')
        release()
        E(f'v_cndmask_b32 v{vX}, 0, v{vG}, s[{sM}:{sM+1}]')
        for r in range(1, 4):
            E(f'v_cndmask_b32 v{vX}, v{vX}, v{vG+r}, s[{sM+2*r}:{sM+2*r+1}]')
        E(f'v_mfma_f32_16x16x4_f32 {vr(vS)}, v{vOnes}, v{vX}, 0')
        for r in range(4): E(f'v_cvt_pk_bf16_f32 v{vP+r}, 0, v{vP+r}')
        E(f'v_cvt_pk_bf16_f32 v{vKsq}, 0, v{vS}')
        for r in range(4): E(f'v_fma_f32 v{vP+r}, v{vKsq}, -0.5, v{vP+r}')
        for r in range(4): E(f'v_cvt_pk_bf16_f32 v{vP+r}, 0, v{vP+r}')
        for r in range(4): E(f'v_fma_f32 v{vP+r}, v{vP+r}, s{sLog2e}, -2.0')
        for r in range(4): E(f'v_exp_f32 v{vP+r}, v{vP+r}')
        for r in range(4): E(f'v_cvt_pk_bf16_f32 v{vP+r}, 0, v{vP+r}')
        for r in range(4): E(f'v_add_f32 v{vP+r}, s{sEps}, v{vP+r}')
        E(f'v_cvt_pk_bf16_f32 v{dstpk}, v{vP}, v{vP+1}')
        E(f'v_cvt_pk_bf16_f32 v{dstpk+1}, v{vP+2}, v{vP+3}')
    wait_for(('om', 0, 3))
    procK(vA3, lambda j: ('q', 0, j), lambda: None, vPhiq)
    if stamps: E('s_memrealtime s[42:43]')
    for (ty, t) in order:
        if ty == 'k':
            def rel():
                st['kfree'] += 1; st['done'] += 1; pump()
            procK(kreg(t), lambda j: ('k', t, j), rel, vPk)
            w = vW + 4*(t % lead)
            E(f'v_mfma_f32_16x16x16_bf16 {vr(w)}, {vr(vPk,2)}, {vr(vPhiq,2)}, 0')
            E(f'v_mfma_f32_16x16x16_bf16 {vr(vDen)}, {vr(vPk,2)}, {vr(vPhiq,2)}, {vr(vDen)}')
        else:
            w = vW + 4*(t % lead)
            for r in range(4): E(f'v_and_b32 v{vT+r}, s{sMask}, v{w+r}')
            for r in range(4): E(f'v_sub_f32 v{vT+r}, v{w+r}, v{vT+r}')
            for r in range(4):
                for c in range(4):
                    E(f'v_perm_b32 v{vA3+4*r+c}, v{w+r}, v{vT+r}, v{vSel+c}')
            for r in range(4):
                wait_for(('v', t, r))
                E(f'v_mfma_f32_16x16x32_bf16 {vr(vAcc)}, {vr(vA3+4*r)}, {ar(vreg(t)+4*r)}, {vr(vAcc)}')
            st['vfree'] += 1; st['done'] += 1; pump()
    if stamps: E('s_memrealtime s[44:45]')
    E(f'v_add_f32 v{vDen}, v{vDen}, v{vDen+1}'); E(f'v_add_f32 v{vDen+2}, v{vDen+2}, v{vDen+3}')
    E(f's_lshl_b32 s18, s{sWave}, 10'); E(f's_lshl_b32 s19, s{sWave}, 8')
    E(f'v_lshlrev_b32 v{vT}, 4, v{vLane}'); E(f'v_lshlrev_b32 v{vT+1}, 2, v{vLane}')
    E(f'v_add_f32 v{vDen}, v{vDen}, v{vDen+2}')
    E(f'v_add_u32 v{vT+2}, s18, v{vT}'); E(f'v_add_u32 v{vT+3}, s19, v{vT+1}')
    E(f'ds_write_b32 v{vT+3}, v{vDen} offset:{NW*1024}')
    E(f'ds_write_b128 v{vT+2}, {vr(vAcc)}')
    E('s_waitcnt lgkmcnt(0)'); E('s_barrier')
    E(f's_cmp_lg_u32 s{sWave}, 0'); E('s_cbranch_scc1 L_fin')
    R = vK if GK*16 >= NW*5 else 60
    assert 60 + NW*5 <= nV or R != 60
    RD = R + 4*NW
    for w in range(NW): E(f'ds_read_b128 {vr(R+4*w)}, v{vT} offset:{w*1024}')
    for w in range(NW): E(f'ds_read_b32 v{RD+w}, v{vT+1} offset:{NW*1024+w*256}')
    E(f'v_and_b32 v{vT+2}, 15, v{vLane}'); E(f'v_lshrrev_b32 v{vT+3}, 4, v{vLane}')
    E(f'v_lshl_add_u32 v{vT+2}, v{vT+2}, 1, v{vT+3}')
    E(f's_lshl_b32 s18, s{sB}, 10')
    E(f'v_lshlrev_b32 v{vT+4}, 4, v{vT+2}'); E(f'v_add_u32 v{vT+4}, s18, v{vT+4}')
    E(f'v_lshlrev_b32 v{vT+5}, 2, v{vT+2}'); E(f'v_add_u32 v{vT+5}, s18, v{vT+5}')
    E('s_waitcnt lgkmcnt(0)')
    n = NW
    while n > 1:
        h = n // 2
        for w in range(h):
            for r in range(4): E(f'v_add_f32 v{R+4*w+r}, v{R+4*w+r}, v{R+4*(w+h)+r}')
            E(f'v_add_f32 v{RD+w}, v{RD+w}, v{RD+w+h}')
        n = h
    for r in range(4): E(f'v_mov_b32 v{R+4+r}, v{R+r}')
    E(f'v_mov_b32 v{RD+1}, v{RD}')
    for r in range(4): E(f'v_permlane32_swap_b32 v{R+r}, v{R+4+r}')
    E(f'v_permlane32_swap_b32 v{RD}, v{RD+1}')
    for r in range(4): E(f'v_add_f32 v{R+r}, v{R+r}, v{R+4+r}')
    E(f'v_add_f32 v{RD}, v{RD}, v{RD+1}')
    E(f'v_mov_b32 v{RD+1}, v{RD}')
    E(f'v_permlane16_swap_b32 v{RD}, v{RD+1}')
    E(f'v_add_f32 v{RD}, v{RD}, v{RD+1}')
    E('s_mov_b32 exec_hi, 0')
    E(f'global_store_dwordx4 v{vT+4}, {vr(R)}, s[16:17] sc0 sc1')
    E(f'global_store_dword v{vT+5}, v{RD}, s[16:17] offset:512 sc0 sc1')
    E(f's_lshl_b32 s18, s{sH}, 2')
    E(f'v_mov_b32 v{vT+6}, s18'); E(f'v_mov_b32 v{vT+7}, 1')
    E('s_mov_b64 exec, 1')
    E('s_waitcnt vmcnt(0)')
    E(f'global_atomic_add v{vX}, v{vT+6}, v{vT+7}, s[14:15] sc0 sc1')
    E('s_mov_b64 exec, -1')
    E(f'v_and_b32 v{vT+2}, 31, v{vLane}'); E(f'v_lshrrev_b32 v{vT+3}, 5, v{vLane}')
    E(f's_lshl_b32 s18, s{sH}, {10+lg}')
    E(f'v_lshlrev_b32 v{vT+3}, 10, v{vT+3}'); E(f'v_add_u32 v{vT+3}, s18, v{vT+3}')
    E(f'v_lshl_add_u32 v{vT+4}, v{vT+2}, 4, v{vT+3}')
    E(f'v_lshl_add_u32 v{vT+5}, v{vT+2}, 2, v{vT+3}')
    E(f's_lshl_b32 s18, s{sH}, 8')
    E(f'v_lshlrev_b32 v{vT+6}, 3, v{vT+2}'); E(f'v_add_u32 v{vT+6}, s18, v{vT+6}')
    E('s_waitcnt vmcnt(0)')
    E(f'v_readfirstlane_b32 s18, v{vX}')
    E(f's_cmp_lg_u32 s18, {PW-1}'); E('s_cbranch_scc1 L_fin')
    NL = PW // 2
    R = 60; RD = R + 4*NL
    assert RD + NL + 8 <= nV
    for n in range(NL):
        if n and n % 2 == 0:
            E(f'v_add_u32 v{vT+4}, 4096, v{vT+4}'); E(f'v_add_u32 v{vT+5}, 4096, v{vT+5}')
        E(f'global_load_dwordx4 {vr(R+4*n)}, v{vT+4}, s[16:17] offset:{(n%2)*2048} sc0 sc1')
        E(f'global_load_dword v{RD+n}, v{vT+5}, s[16:17] offset:{(n%2)*2048+512} sc0 sc1')
    E('s_waitcnt vmcnt(0)')
    n = NL
    while n > 1:
        h = n // 2
        for w in range(h):
            for r in range(4): E(f'v_add_f32 v{R+4*w+r}, v{R+4*w+r}, v{R+4*(w+h)+r}')
            E(f'v_add_f32 v{RD+w}, v{RD+w}, v{RD+w+h}')
        n = h
    U = RD + 1
    for r in range(4): E(f'v_mov_b32 v{U+1+r}, v{R+r}')
    E(f'v_mov_b32 v{U}, v{RD}')
    for r in range(4): E(f'v_permlane32_swap_b32 v{R+r}, v{U+1+r}')
    E(f'v_permlane32_swap_b32 v{RD}, v{U}')
    E(f'v_add_f32 v{RD}, v{RD}, v{U}')
    for r in range(4): E(f'v_add_f32 v{R+r}, v{R+r}, v{U+1+r}')
    E(f'v_cvt_pk_bf16_f32 v{RD}, 0, v{RD}')
    E(f'v_add_f32 v{RD}, s{sEps}, v{RD}')
    E(f'v_cvt_pk_bf16_f32 v{RD}, 0, v{RD}')
    E(f'v_rcp_f32 v{RD}, v{RD}')
    for r in range(4): E(f'v_cvt_pk_bf16_f32 v{R+r}, 0, v{R+r}')
    for r in range(4): E(f'v_mul_f32 v{R+r}, v{R+r}, v{RD}')
    E(f'v_cvt_pk_bf16_f32 v{R}, v{R}, v{R+1}')
    E(f'v_cvt_pk_bf16_f32 v{R+1}, v{R+2}, v{R+3}')
    E('s_mov_b32 exec_hi, 0')
    E(f'global_store_dwordx2 v{vT+6}, {vr(R,2)}, s[12:13]')
    E.label('L_fin')
    if stamps:
        E('s_waitcnt vmcnt(0)')
        E('s_memrealtime s[46:47]'); E('s_waitcnt lgkmcnt(0)')
        E(f's_mul_i32 s18, s2, {NW}'); E(f's_add_u32 s18, s18, s{sWave}'); E('s_lshl_b32 s18, s18, 5'); E('s_add_u32 s18, s18, 0x8000000')
        E('s_add_u32 s16, s16, s18'); E('s_addc_u32 s17, s17, 0')
        E('s_mov_b64 exec, 1')
        for i in range(8): E(f'v_mov_b32 v{60+i}, s{40+i}')
        E('v_mov_b32 v1, 0')
        E('global_store_dwordx4 v1, v[60:63], s[16:17]')
        E('global_store_dwordx4 v1, v[64:67], s[16:17] offset:16')
    E.label('L_end'); E('s_endpgm')
    acc_off = (nV + 3)//4*4
    tot = acc_off + 16*GV
    assert acc_off <= 256 and tot <= 512 // max(1, NW//4), (acc_off, tot)
    E.raw('.section .rodata,"a"'); E.raw('.p2align 6'); E.raw(f'.amdhsa_kernel {KN}')
    E.raw(f'  .amdhsa_next_free_vgpr {tot}'); E.raw('  .amdhsa_next_free_sgpr 64'); E.raw(f'  .amdhsa_accum_offset {acc_off}')
    E.raw('  .amdhsa_group_segment_fixed_size 0'); E.raw('  .amdhsa_kernarg_size 56'); E.raw('  .amdhsa_user_sgpr_count 2')
    E.raw('  .amdhsa_user_sgpr_kernarg_segment_ptr 1'); E.raw('  .amdhsa_system_sgpr_workgroup_id_x 1')
    E.raw('  .amdhsa_float_denorm_mode_32 3')
    E.raw('.end_amdhsa_kernel')
    sys.stderr.write(f'T={T} vgpr={nV} acc_off={acc_off} tot={tot} nops={E.nops} counts={E.counts}\n')
    return E.text()
if __name__ == '__main__':
    ap = argparse.ArgumentParser()
    ap.add_argument('out')
    for k, d in dict(NW=8, NWG=256, GK=4, GV=4, G=8, lead=2, inter=1, xcdmap=0, stamps=0, lds_min=0, kfirst=0).items(): ap.add_argument('--'+k, type=int, default=d)
    ap.add_argument('--flags', default='nt'); ap.add_argument('--final', default='last')
    a = vars(ap.parse_args()); o = a.pop('out')
    open(o, 'w').write(gen(**a))
```

```python
import sys, argparse, struct
from emit import Emit
KN = 'standalone__linear_kernel_rfa__decode_kernel'
HEADER = """; Kernarg layout for this problem (56 bytes, ptrs only, base s[0:1]):
"""
def f2u(x): return struct.unpack('<I', struct.pack('<f', x))[0]
SCALE = f2u(128.0 ** -0.25)
LOG2E = f2u(1.4426950408889634)
EPS_BF = 0x35860000
TAGC = 0x9E3779B1
EPOCH_OFF = 0x100000

DEFAULTS = dict(NW=4, GK=5, GV=5, D=20, lead=3, inter=3, xcdmap=0, stamps=0, lds_min=90000, kfirst=0, spin=0, noload=0, rot=4, prepoll=1, outsc=0, pollsleep=0, cut=0, st2=0, epplain=1, prea3=0, noinit=0, grp=0, omlds=1, midt=6, warmout=1)
def gen(NW=4, GK=5, GV=5, D=20, lead=3, flags='nt', inter=3, xcdmap=0, stamps=0, lds_min=90000, final='poll', kfirst=0, spin=0, noload=0, rot=4, prepoll=1, outsc=0, pollsleep=0, cut=0, st2=0, epplain=1, prea3=0, noinit=0, grp=0, omlds=1, midt=6, warmout=1):
    NWG = 256; PW = 8
    tiles_per_wg = 64
    T = tiles_per_wg // NW
    E = Emit()
    LR = 8192 if omlds else 0
    lds = max(LR + NW*1280, lds_min)
    E.raw(HEADER.rstrip())
    E.raw(f'; @launch grid=({NWG},1,1) block=({NW*64},1,1) lds={lds}')
    E.raw('.amdgcn_target "amdgcn-amd-amdhsa--gfx950"'); E.raw('.text'); E.raw(f'.globl {KN}'); E.raw('.p2align 8')
    E.raw(f'.type {KN},@function'); E.raw(f'{KN}:')
    vLane, vKoff, vVoff, vOnes = 0, 1, 2, 3
    vSel = 4; vPhiq = 8; vX = 10; vKsq = 11; vAcc = 12; vDen = 16; vOm = 20; vP = 36; vG = 40; vS = 44
    vT = 48; vPk = 56; vQoff = 58; vTag = 59; vA3 = 60; vW = 76; vK = vW + 4*lead
    nV = max(vK + 16*GK, 60 + 8*4 + 24)
    sK, sV = 20, 24
    sKo, sVo = 28, 29
    sWave, sB, sH = 30, 31, 32
    sScale = 34; sMask, sLog2e, sEps = 36, 37, 38
    sM = 48
    def vr(b, n=4): return f'v[{b}:{b+n-1}]'
    def ar(b, n=4): return f'a[{b}:{b+n-1}]'
    if stamps or spin: E('s_memrealtime s[40:41]')
    E('s_load_dwordx4 s[4:7], s[0:1], 0')
    E('s_load_dwordx4 s[8:11], s[0:1], 16')
    E('s_load_dwordx4 s[12:15], s[0:1], 32')
    E('s_load_dwordx2 s[16:17], s[0:1], 48')
    E(f's_cmp_ge_u32 s2, {NWG}'); E('s_cbranch_scc1 L_end')
    E(f'v_lshrrev_b32 v{vTag}, 6, v0')
    if omlds: E(f'v_lshlrev_b32 v{vG}, 4, v0')
    E(f'v_and_b32 v{vLane}, 63, v0')
    E(f'v_readfirstlane_b32 s{sWave}, v{vTag}')
    E(f'v_and_b32 v{vT}, 15, v{vLane}')
    E(f'v_lshrrev_b32 v{vT+1}, 4, v{vLane}')
    E(f'v_lshlrev_b32 v{vQoff}, 4, v{vT+1}')
    E(f'v_lshl_add_u32 v{vKoff}, v{vT}, 8, v{vQoff}')
    E(f'v_lshlrev_b32 v{vVoff}, 10, v{vT+1}')
    E(f'v_lshl_add_u32 v{vVoff}, v{vT}, 4, v{vVoff}')
    if xcdmap:
        E('s_and_b32 s18, s2, 7'); E(f's_lshl_b32 s18, s18, 5'); E('s_lshr_b32 s19, s2, 3'); E(f's_add_u32 s{sB}, s18, s19')
    else:
        E(f's_mov_b32 s{sB}, s2')
    E(f's_lshr_b32 s{sH}, s{sB}, 3')
    if inter == 1:
        E(f's_lshl_b32 s58, s{sB}, 18'); E(f's_lshl_b32 s18, s{sWave}, 12'); E(f's_add_u32 s58, s58, s18'); step = 4096*NW
    elif inter == 3:
        E(f's_lshl_b32 s58, s{sH}, 21'); E(f's_and_b32 s18, s{sB}, {PW-1}'); E(f's_mul_i32 s18, s18, {NW*4096}'); E(f's_add_u32 s58, s58, s18')
        E(f's_lshl_b32 s18, s{sWave}, 12'); E(f's_add_u32 s58, s58, s18'); step = 4096*NW*PW
    if rot == 0: E('s_mov_b32 s56, 0')
    elif rot == 1: E(f's_mov_b32 s56, s{sH}')
    elif rot == 2: E(f's_mov_b32 s56, s{sB}')
    elif rot == 4: E(f's_add_u32 s56, s{sH}, s{sWave}')
    E(f's_and_b32 s56, s56, {T-1}'); E(f's_mul_i32 s56, s56, {step}'); E('s_mov_b32 s57, s56')
    E(f's_add_u32 s{sKo}, s58, s56')
    E(f's_mov_b32 s{sVo}, s{sKo}')
    E(f's_lshl_b32 s18, s{sH}, 8')
    if omlds:
        E(f'v_lshl_add_u32 v{vG+1}, v{vLane}, 4, s18')
    else:
        E(f'v_add_u32 v{vQoff}, s18, v{vQoff}')
    if final != 'last':
        E(f's_lshl_b32 s19, s{sH}, 7'); E(f's_add_u32 s19, s19, {EPOCH_OFF:#x}')
        E(f'v_mov_b32 v{vX}, s19')
    E(f's_mov_b32 s{sK+2}, 0x4000000'); E(f's_mov_b32 s{sK+3}, 0x20000')
    E(f's_mov_b32 s{sV+2}, 0x4000000'); E(f's_mov_b32 s{sV+3}, 0x20000')
    E('s_waitcnt lgkmcnt(0)')
    E(f's_mov_b32 s{sK}, s6'); E(f's_mov_b32 s{sK+1}, s7')
    E(f's_mov_b32 s{sV}, s8'); E(f's_mov_b32 s{sV+1}, s9')
    issued = []
    order = []
    ki = vi = 0
    while ki < T or vi < T:
        if ki < T and (ki - vi < lead or vi >= T): order.append(('k', ki)); ki += 1
        else: order.append(('v', vi)); vi += 1
    stream = [(ty, t, j) for (ty, t) in order for j in range(4)]
    st = dict(nxt=0, arrived=0)
    released = {'k': -1, 'v': -1}
    def kreg(t): return vK + 16*(t % GK)
    def vreg(t): return 16*(t % GV)
    def issue_one():
        ty, t, j = stream[st['nxt']]
        if not noload:
            if ty == 'k':
                E(f'buffer_load_dwordx4 {vr(kreg(t)+4*j)}, v{vKoff}, s[{sK}:{sK+3}], s{sKo} offen offset:{64*j} {flags}')
            else:
                E(f'buffer_load_dwordx4 {ar(vreg(t)+4*j)}, v{vVoff}, s[{sV}:{sV+3}], s{sVo} offen offset:{256*j} {flags}')
        issued.append((ty, t, j))
        if j == 3 and t < T-1:
            r, o = ('s56', f's{sKo}') if ty == 'k' else ('s57', f's{sVo}')
            E(f's_add_u32 {r}, {r}, {step}'); E(f's_and_b32 {r}, {r}, {step*T-1}'); E(f's_add_u32 {o}, s58, {r}')
        st['nxt'] += 1
    def pump(maxn=999):
        n = 0
        while st['nxt'] < len(stream) and st['nxt'] - st['arrived'] < D and n < maxn:
            ty, t, j = stream[st['nxt']]
            G_ = GK if ty == 'k' else GV
            if t - G_ > released[ty]:
                sys.stderr.write(f'  slot stall at {ty}{t}.{j}\n'); break
            issue_one(); n += 1
    def wait_for(tag):
        if tag not in issued and noinit: return
        if grp and tag in stream:
            if tag[2] != 0: return
            tag = (tag[0], tag[1], 3)
        idx = issued.index(tag)
        n = len(issued) - 1 - idx
        assert n <= 63, n
        if noload and tag[0] in 'kv': return
        if noload: n = 0
        E(f's_waitcnt vmcnt({n})')
        if tag in stream:
            st['arrived'] = stream.index(tag) + 1
            pump()
    if kfirst: pump(kfirst)
    if omlds:
        assert NW == 4
        if not kfirst:
            E(f's_cmp_lg_u32 s{sWave}, 0'); E('s_cbranch_scc1 L_noq')
            E('s_mov_b32 m0, 4096'); E('s_mov_b64 exec, 0xffff')
            E(f'global_load_lds_dwordx4 v{vG+1}, s[4:5]')
            E('s_mov_b64 exec, -1')
            E.label('L_noq')
        else:
            E('s_mov_b32 m0, 4096'); E('s_mov_b64 exec, 0xffff')
            E(f'global_load_lds_dwordx4 v{vG+1}, s[4:5]'); issued.append(('q', 0, 0))
            E('s_mov_b64 exec, -1')
        E(f's_lshl_b32 m0, s{sWave}, 10'); E('s_nop 0')
        E(f'global_load_lds_dwordx4 v{vG}, s[10:11]'); issued.append(('om', 0, 3))
    else:
        for j in range(4):
            if noinit & 1: break
            E(f'global_load_dwordx4 {vr(vOm+4*j)}, v{vKoff}, s[10:11] offset:{64*j}'); issued.append(('om', 0, j))
        for j in range(4):
            if noinit & 2: break
            E(f'global_load_dwordx4 {vr(vA3+4*j)}, v{vQoff}, s[4:5] offset:{64*j}'); issued.append(('q', 0, j))
    if final != 'last' and not noinit & 4 and midt < 0:
        E(f'global_load_dword v{vTag}, v{vX}, s[16:17] sc0 sc1'); issued.append(('ep', 0, 0))
    pump()
    E(f's_mov_b32 s{sScale}, {SCALE:#x}'); E(f's_mov_b32 s{sScale+1}, {SCALE:#x}')
    E(f's_mov_b32 s{sMask}, 0xffff0000'); E(f's_mov_b32 s{sLog2e}, {LOG2E:#x}'); E(f's_mov_b32 s{sEps}, {EPS_BF:#x}')
    for r in range(4):
        E(f's_mov_b32 s{sM+2*r}, {((1 | 1 << 20) << r):#x}'); E(f's_mov_b32 s{sM+2*r+1}, {((1 << 8 | 1 << 28) << r):#x}')
    E(f'v_mov_b32 v{vOnes}, 1.0')
    for r in range(4):
        E(f'v_mov_b32 v{vAcc+r}, 0'); E(f'v_mov_b32 v{vDen+r}, 0')
    E(f'v_mov_b32 v{vT+2}, 0x0706'); E(f'v_mov_b32 v{vT+3}, 0x0302')
    E(f'v_cmp_gt_u32 vcc, 8, v{vT}')
    E(f'v_cndmask_b32 v{vT+2}, v{vT+3}, v{vT+2}, vcc')
    E(f'v_lshlrev_b32 v{vT+3}, 16, v{vT+2}'); E(f'v_or_b32 v{vT+3}, 0x0c0c, v{vT+3}')
    E(f'v_or_b32 v{vT+2}, 0x0c0c0000, v{vT+2}')
    E(f'v_and_b32 v{vT+4}, 1, v{vT}')
    E(f'v_cmp_eq_u32 vcc, 1, v{vT+4}')
    E(f'v_cndmask_b32 v{vT+2}, v{vT+2}, v{vT+3}, vcc')
    E(f'v_bfe_u32 v{vT+4}, v{vT}, 1, 2')
    E(f'v_mov_b32 v{vT+3}, 0x0c0c0c0c')
    for c in range(4):
        E(f'v_cmp_eq_u32 vcc, {c}, v{vT+4}')
        E(f'v_cndmask_b32 v{vSel+c}, v{vT+3}, v{vT+2}, vcc')
    def procK(base, tagf, release, dstpk):
        for j in range(4):
            if tagf: wait_for(tagf(j))
            b = base + 4*j
            for c in range(4):
                if cut & 1: break
                E(f'v_lshlrev_b32 v{vT+2*c}, 16, v{b+c}')
                E(f'v_and_b32 v{vT+2*c+1}, s{sMask}, v{b+c}')
            for c in range(4):
                if cut & 1: break
                E(f'v_pk_mul_f32 {vr(vT+2*c,2)}, {vr(vT+2*c,2)}, s[{sScale}:{sScale+1}]')
            for c in range(4):
                if cut & 1: break
                E(f'v_cvt_pk_bf16_f32 v{b+c}, v{vT+2*c}, v{vT+2*c+1}')
            if j > 0 and not cut & 2:
                jj = j-1; bb = base + 4*jj
                E(f'v_mfma_f32_16x16x32_bf16 {vr(vG)}, {vr(bb)}, {vr(bb)}, {vr(vG) if jj else 0}')
                E(f'v_mfma_f32_16x16x32_bf16 {vr(vP)}, {vr(vOm+4*jj)}, {vr(bb)}, {vr(vP) if jj else 0}')
        bb = base + 12
        if not cut & 2:
            E(f'v_mfma_f32_16x16x32_bf16 {vr(vG)}, {vr(bb)}, {vr(bb)}, {vr(vG)}')
            E(f'v_mfma_f32_16x16x32_bf16 {vr(vP)}, {vr(vOm+12)}, {vr(bb)}, {vr(vP)}')
        release()
        if cut & 4: return
        E(f'v_cndmask_b32 v{vX}, 0, v{vG}, s[{sM}:{sM+1}]')
        for r in range(1, 4):
            E(f'v_cndmask_b32 v{vX}, v{vX}, v{vG+r}, s[{sM+2*r}:{sM+2*r+1}]')
        E(f'v_mfma_f32_16x16x4_f32 {vr(vS)}, v{vOnes}, v{vX}, 0')
        for r in range(4): E(f'v_cvt_pk_bf16_f32 v{vP+r}, 0, v{vP+r}')
        E(f'v_cvt_pk_bf16_f32 v{vKsq}, 0, v{vS}')
        for r in range(4): E(f'v_fma_f32 v{vP+r}, v{vKsq}, -0.5, v{vP+r}')
        for r in range(4): E(f'v_cvt_pk_bf16_f32 v{vP+r}, 0, v{vP+r}')
        for r in range(4): E(f'v_fma_f32 v{vP+r}, v{vP+r}, s{sLog2e}, -2.0')
        for r in range(4): E(f'v_exp_f32 v{vP+r}, v{vP+r}')
        for r in range(4): E(f'v_cvt_pk_bf16_f32 v{vP+r}, 0, v{vP+r}')
        for r in range(4): E(f'v_add_f32 v{vP+r}, s{sEps}, v{vP+r}')
        E(f'v_cvt_pk_bf16_f32 v{dstpk}, v{vP}, v{vP+1}')
        E(f'v_cvt_pk_bf16_f32 v{dstpk+1}, v{vP+2}, v{vP+3}')
    wait_for(('om', 0, 3))
    if omlds:
        E('s_barrier')
        for j in range(4): E(f'ds_read_b128 {vr(vA3+4*j)}, v{vQoff} offset:{4096+64*j}')
        for j in range(4): E(f'ds_read_b128 {vr(vOm+4*j)}, v{vKoff} offset:{64*j}')
        E('s_waitcnt lgkmcnt(0)')
        procK(vA3, None, lambda: None, vPhiq)
    else:
        procK(vA3, lambda j: ('q', 0, j), lambda: None, vPhiq)
    if stamps and not st2: E('s_memrealtime s[42:43]')
    for (ty, t) in order:
        if ty == 'k':
            def rel():
                released['k'] = t; pump()
            if t == midt:
                if final != 'last':
                    E(f's_lshl_b32 s19, s{sH}, 7'); E(f's_add_u32 s19, s19, {EPOCH_OFF:#x}')
                    E(f'v_mov_b32 v{vX}, s19')
                    E(f'global_load_dword v{vTag}, v{vX}, s[16:17] sc0 sc1'); issued.append(('ep', 0, 0))
                if warmout:
                    E(f's_lshl_b32 s19, s{sH}, 8'); E(f'v_mov_b32 v{vQoff}, s19')
                    E(f'global_load_dword v{vQoff}, v{vQoff}, s[12:13]'); issued.append(('wo', 0, 0))
            procK(kreg(t), lambda j: ('k', t, j), rel, vPk)
            w = vW + 4*(t % lead)
            if not cut & 4:
                E(f'v_mfma_f32_16x16x16_bf16 {vr(w)}, {vr(vPk,2)}, {vr(vPhiq,2)}, 0')
                E(f'v_mfma_f32_16x16x16_bf16 {vr(vDen)}, {vr(vPk,2)}, {vr(vPhiq,2)}, {vr(vDen)}')
            if st2 == 1 and t == T-1: E('s_memrealtime s[42:43]')
        else:
            w = vW + 4*(t % lead)
            if not cut & 8:
                for r in range(4): E(f'v_and_b32 v{vT+r}, s{sMask}, v{w+r}')
                for r in range(4): E(f'v_sub_f32 v{vT+r}, v{w+r}, v{vT+r}')
                for r in range(4):
                    for c in range(4):
                        E(f'v_perm_b32 v{vA3+4*r+c}, v{w+r}, v{vT+r}, v{vSel+c}')
            if t == T-1:
                E(f'v_add_f32 v{vDen}, v{vDen}, v{vDen+1}'); E(f'v_add_f32 v{vDen+2}, v{vDen+2}, v{vDen+3}')
                E(f's_lshl_b32 s18, s{sWave}, 10'); E(f's_lshl_b32 s19, s{sWave}, 8')
                E(f'v_lshlrev_b32 v{vT}, 4, v{vLane}'); E(f'v_lshlrev_b32 v{vT+1}, 2, v{vLane}')
                E(f'v_add_f32 v{vDen}, v{vDen}, v{vDen+2}')
                E(f'v_add_u32 v{vT+2}, s18, v{vT}'); E(f'v_add_u32 v{vT+3}, s19, v{vT+1}')
                E(f'v_mov_b32 v{vDen+1}, v{vDen}')
                E(f'v_permlane16_swap_b32 v{vDen}, v{vDen+1}')
                E(f'v_add_f32 v{vDen}, v{vDen}, v{vDen+1}')
                E(f'ds_write_b32 v{vT+3}, v{vDen} offset:{LR+NW*1024}')
                E(f's_xor_b32 s33, s{sB}, s{sH}'); E('s_and_b32 s33, s33, 7')
                E(f's_lshl_b32 s18, s{sH}, 13'); E(f'v_add_u32 v{vT+5}, s18, v{vT}')
                E(f's_lshl_b32 s18, s33, 10'); E(f'v_add_u32 v{vT+4}, s18, v{vT+5}')
                E(f'v_add_u32 v{vT+6}, 4096, v{vT+5}')
                E(f'v_and_b32 v{vP}, 15, v{vLane}'); E(f'v_bfe_u32 v{vP+1}, v{vLane}, 4, 1')
                E(f'v_lshlrev_b32 v{vP}, 4, v{vP}'); E(f'v_lshl_add_u32 v{vP}, v{vP+1}, 3, v{vP}')
                E(f's_lshl_b32 s18, s{sH}, 8'); E(f'v_add_u32 v{vT+7}, s18, v{vP}')
                if final != 'last':
                    E(f'v_add_u32 v{vTag}, {TAGC:#x}, v{vTag}')
                    E(f's_lshl_b32 s19, s{sH}, 7'); E(f's_add_u32 s19, s19, {EPOCH_OFF:#x}')
                    E(f'v_mov_b32 v{vX}, s19')
            for r in range(4):
                wait_for(('v', t, r))
                if not cut & 16: E(f'v_mfma_f32_16x16x32_bf16 {vr(vAcc)}, {vr(vA3+4*r)}, {ar(vreg(t)+4*r)}, {vr(vAcc)}')
            released['v'] = t; pump()
    if stamps: E('s_memrealtime s[44:45]')
    RC = 60
    R = 92
    assert R + NW*5 <= nV, (R + NW*5, nV)
    RD = R + 4*NW
    def load_records(first=0):
        for n in range(first, 8):
            E(f'global_load_dwordx4 {vr(RC+4*n)}, v{vT+5+(n>>2)}, s[16:17] offset:{(n&3)*1024} sc0 sc1')
    E(f'ds_write_b128 v{vT+2}, {vr(vAcc)} offset:{LR}')
    if final == 'poll' and prepoll:
        E(f's_or_b32 s18, s33, s{sWave}'); E('s_cbranch_scc1 L_nopre')
        load_records(1)
        E.label('L_nopre')
    E('s_waitcnt lgkmcnt(0)'); E('s_barrier')
    if st2 == 2: E('s_memrealtime s[42:43]')
    E(f's_cmp_lg_u32 s{sWave}, 0'); E('s_cbranch_scc1 L_fin')
    for w in range(NW): E(f'ds_read_b128 {vr(R+4*w)}, v{vT} offset:{LR+w*1024}')
    for w in range(NW): E(f'ds_read_b32 v{RD+w}, v{vT+1} offset:{LR+NW*1024+w*256}')
    E('s_waitcnt lgkmcnt(0)')
    n = NW
    while n > 1:
        h = n // 2
        for w in range(h):
            for r in range(4): E(f'v_add_f32 v{R+4*w+r}, v{R+4*w+r}, v{R+4*(w+h)+r}')
            E(f'v_add_f32 v{RD+w}, v{RD+w}, v{RD+w+h}')
        n = h
    E(f'v_mov_b32 v{R+4}, v{R+2}')
    E(f'v_permlane32_swap_b32 v{R}, v{R+3}')
    E(f'v_permlane32_swap_b32 v{R+1}, v{RD}')
    E(f'v_permlane32_swap_b32 v{R+2}, v{R+4}')
    E(f'v_add_f32 v{R}, v{R}, v{R+3}')
    E(f'v_add_f32 v{R+1}, v{R+1}, v{RD}')
    E(f'v_add_f32 v{R+2}, v{R+2}, v{R+4}')
    if st2 == 2: E('s_memrealtime s[42:43]')
    def check_tags(first):
        E(f'v_xor_b32 v{vP}, v{RC+4*first+3}, v{vTag}')
        for n in range(first+1, 8):
            E(f'v_bitop3_b32 v{vP}, v{vP}, v{RC+4*n+3}, v{vTag} bitop3:0xf6')
        E(f'v_cmp_ne_u32 vcc, 0, v{vP}')
    def finalize():
        for r in range(3):
            E(f'v_add_f32 v{RC+r}, v{RC+r}, v{RC+4+r}'); E(f'v_add_f32 v{RC+8+r}, v{RC+8+r}, v{RC+12+r}')
            E(f'v_add_f32 v{RC+16+r}, v{RC+16+r}, v{RC+20+r}'); E(f'v_add_f32 v{RC+24+r}, v{RC+24+r}, v{RC+28+r}')
        for r in range(3):
            E(f'v_add_f32 v{RC+r}, v{RC+r}, v{RC+8+r}'); E(f'v_add_f32 v{RC+16+r}, v{RC+16+r}, v{RC+24+r}')
        for r in range(3): E(f'v_add_f32 v{RC+r}, v{RC+r}, v{RC+16+r}')
        E(f'v_permlane32_swap_b32 v{RC+1}, v{RC+4}')
        E(f'v_permlane32_swap_b32 v{RC}, v{RC+3}')
        E(f'v_cvt_pk_bf16_f32 v{RC+4}, 0, v{RC+4}')
        E(f'v_add_f32 v{RC+4}, s{sEps}, v{RC+4}')
        E(f'v_cvt_pk_bf16_f32 v{RC+4}, 0, v{RC+4}')
        E(f'v_rcp_f32 v{RC+4}, v{RC+4}')
        for r in range(4): E(f'v_cvt_pk_bf16_f32 v{RC+r}, 0, v{RC+r}')
        for r in range(4): E(f'v_mul_f32 v{RC+r}, v{RC+r}, v{RC+4}')
        E(f'v_cvt_pk_bf16_f32 v{RC}, v{RC}, v{RC+1}')
        E(f'v_cvt_pk_bf16_f32 v{RC+1}, v{RC+2}, v{RC+3}')
        E('s_mov_b32 exec_hi, 0')
        E(f'global_store_dwordx2 v{vT+7}, {vr(RC,2)}, s[12:13]' + (' sc0 sc1' if outsc else ''))
    if final == 'last':
        E(f'global_store_dwordx4 v{vT+4}, {vr(R)}, s[16:17] sc0 sc1')
        E(f's_lshl_b32 s18, s{sH}, 2')
        E(f'v_mov_b32 v{vP}, s18'); E(f'v_mov_b32 v{vP+1}, 1')
        E('s_mov_b64 exec, 1')
        E('s_waitcnt vmcnt(0)')
        E(f'global_atomic_add v{vX}, v{vP}, v{vP+1}, s[14:15] sc0 sc1')
        E('s_mov_b64 exec, -1')
        E('s_waitcnt vmcnt(0)')
        E(f'v_readfirstlane_b32 s18, v{vX}')
        E(f's_cmp_lg_u32 s18, {PW-1}'); E('s_cbranch_scc1 L_fin')
        load_records()
        E('s_waitcnt vmcnt(0)')
        finalize()
    elif final == 'sym':
        E(f'v_mov_b32 v{R+3}, v{vTag}')
        E(f'global_store_dwordx4 v{vT+4}, {vr(R)}, s[16:17] sc0 sc1')
        E('s_waitcnt vmcnt(0)')
        load_records()
        E('s_waitcnt vmcnt(0)')
        check_tags(0)
        E('s_cbranch_vccnz L_fin')
        finalize()
        E('s_mov_b64 exec, 1')
        E(f'global_store_dword v{vX}, v{vTag}, s[16:17]' + ('' if epplain else ' sc0 sc1'))
    elif final == 'poll':
        E(f'v_mov_b32 v{R+3}, v{vTag}')
        E('s_cmp_eq_u32 s33, 0'); E('s_cbranch_scc1 L_cons')
        E(f'global_store_dwordx4 v{vT+4}, {vr(R)}, s[16:17] sc0 sc1')
        E('s_branch L_fin')
        E.label('L_repoll')
        E('s_sub_u32 s39, s39, 1'); E('s_cbranch_scc1 L_fin')
        if pollsleep: E(f's_sleep {pollsleep}')
        load_records(1)
        E('s_branch L_poll')
        E.label('L_cons')
        E('s_mov_b32 s39, 0x200000')
        if not prepoll:
            load_records(1)
        for r in range(3): E(f'v_mov_b32 v{RC+r}, v{R+r}')
        E.label('L_poll')
        E('s_waitcnt vmcnt(0)')
        check_tags(1)
        E('s_cbranch_vccnz L_repoll')
        finalize()
        E('s_mov_b64 exec, 1')
        E(f'global_store_dword v{vX}, v{vTag}, s[16:17]' + ('' if epplain else ' sc0 sc1'))
    E.label('L_fin')
    if spin:
        E.label('L_spin')
        E('s_memrealtime s[46:47]'); E('s_waitcnt lgkmcnt(0)')
        E('s_sub_u32 s18, s46, s40'); E(f's_cmp_lt_u32 s18, {spin}'); E('s_cbranch_scc1 L_spin')
    if stamps:
        E('s_waitcnt vmcnt(0)')
        E('s_memrealtime s[46:47]'); E('s_waitcnt lgkmcnt(0)')
        E(f's_mul_i32 s18, s2, {NW}'); E(f's_add_u32 s18, s18, s{sWave}'); E('s_lshl_b32 s18, s18, 5'); E('s_add_u32 s18, s18, 0x8000000')
        E('s_add_u32 s16, s16, s18'); E('s_addc_u32 s17, s17, 0')
        E('s_mov_b64 exec, 1')
        for i in range(8): E(f'v_mov_b32 v{60+i}, s{40+i}')
        E('v_mov_b32 v1, 0')
        E('global_store_dwordx4 v1, v[60:63], s[16:17]')
        E('global_store_dwordx4 v1, v[64:67], s[16:17] offset:16')
    E.label('L_end'); E('s_endpgm')
    acc_off = (nV + 3)//4*4
    tot = acc_off + 16*GV
    assert acc_off <= 256 and tot <= 512 // max(1, NW//4), (acc_off, tot)
    E.raw('.section .rodata,"a"'); E.raw('.p2align 6'); E.raw(f'.amdhsa_kernel {KN}')
    E.raw(f'  .amdhsa_next_free_vgpr {tot}'); E.raw('  .amdhsa_next_free_sgpr 64'); E.raw(f'  .amdhsa_accum_offset {acc_off}')
    E.raw('  .amdhsa_group_segment_fixed_size 0'); E.raw('  .amdhsa_kernarg_size 56'); E.raw('  .amdhsa_user_sgpr_count 2')
    E.raw('  .amdhsa_user_sgpr_kernarg_segment_ptr 1'); E.raw('  .amdhsa_system_sgpr_workgroup_id_x 1')
    E.raw('  .amdhsa_float_denorm_mode_32 3')
    E.raw('.end_amdhsa_kernel')
    sys.stderr.write(f'T={T} vgpr={nV} acc_off={acc_off} tot={tot} nops={E.nops} counts={E.counts}\n')
    return E.text()
if __name__ == '__main__':
    ap = argparse.ArgumentParser()
    ap.add_argument('out')
    for k, d in DEFAULTS.items(): ap.add_argument('--'+k, type=int, default=d)
    ap.add_argument('--flags', default='nt'); ap.add_argument('--final', default='poll')
    a = vars(ap.parse_args()); o = a.pop('out')
    open(o, 'w').write(gen(**a))
```
